```python
import torch

def _softmax(x, axis=-1):
    return torch.softmax(x, dim=axis)
def _gelu(x):
    return torch.nn.functional.gelu(x, approximate="tanh")
def _silu(x):
    return torch.nn.functional.silu(x)
def _sigmoid(x):
    return torch.sigmoid(x)
def _layernorm(x, axis=-1, eps=1e-5):
    m = x.mean(dim=axis, keepdim=True)
    v = x.var(dim=axis, keepdim=True, unbiased=False)
    return (x - m) / torch.sqrt(v + eps)
def _scatter_add(tgt, idx, src, axis=0):
    return tgt.clone().index_add_(axis, idx, src)
def _segment_sum(src, seg, n):
    out = torch.zeros((n,) + src.shape[1:], dtype=src.dtype)
    return out.index_add_(0, seg, src)
def _pad(x, pw):
    flat = tuple(v for pair in reversed(pw) for v in pair)
    return torch.nn.functional.pad(x, flat)

kernel_name = 'concat_heads__mha_block__mha_block__prompt'

def setup_inputs():

    _w = (lambda a: (lambda t: t.to(torch.bfloat16) if t.is_floating_point() else t)(torch.as_tensor(a)))
    def _A_setup():
        B, S, D, H = 1, 2048, 512, 32
        return {
            "x": _w((lambda *s: torch.randn(*s, dtype=torch.bfloat16) * 0.2)(B, S, D)),
            "wqkv": _w((lambda *s: torch.randn(*s, dtype=torch.bfloat16) * 0.2)(D, 3 * D)),
            "wo": _w((lambda *s: torch.randn(*s, dtype=torch.bfloat16) * 0.05)(D, D)),
        }
    _A_in = _A_setup()

    def _B_setup():
        B, S, D, H = 1, 2048, 512, 32
        return {
            "x": _w((lambda *s: torch.randn(*s, dtype=torch.bfloat16) * 0.2)(B, S, D)),
            "wqkv": _w((lambda *s: torch.randn(*s, dtype=torch.bfloat16) * 0.2)(D, 3 * D)),
            "wo": _w((lambda *s: torch.randn(*s, dtype=torch.bfloat16) * 0.05)(D, D)),
        }
    _B_in = _B_setup()

    return {
        "A_x": _A_in["x"],
        "A_wqkv": _A_in["wqkv"],
        "A_wo": _A_in["wo"],
        "B_x": _B_in["x"],
        "B_wqkv": _B_in["wqkv"],
        "B_wo": _B_in["wo"],
    }

def reference(A_x, A_wqkv, A_wo, B_x, B_wqkv, B_wo):
    def _A_ref(x, wqkv, wo):
        B, S, D = x.shape
        H = 32
        Dh = D // H
        qkv = (lambda x, *d: x.permute(*d))((x @ wqkv).reshape(B, S, 3, H, Dh), 2, 0, 3, 1, 4)
        q, k, v = qkv[0], qkv[1], qkv[2]
        scores = torch.einsum("bhqd,bhkd->bhqk", q, k) * (Dh ** -0.5)
        p = _softmax(scores, axis=-1)
        o = torch.einsum("bhqk,bhkd->bhqd", p, v)
        return (lambda x, *d: x.permute(*d))(o, 0, 2, 1, 3).reshape(B, S, D) @ wo

    def _B_ref(x, wqkv, wo):
        B, S, D = x.shape
        H = 32
        Dh = D // H
        qkv = (lambda x, *d: x.permute(*d))((x @ wqkv).reshape(B, S, 3, H, Dh), 2, 0, 3, 1, 4)
        q, k, v = qkv[0], qkv[1], qkv[2]
        scores = torch.einsum("bhqd,bhkd->bhqk", q, k) * (Dh ** -0.5)
        p = _softmax(scores, axis=-1)
        o = torch.einsum("bhqk,bhkd->bhqd", p, v)
        return (lambda x, *d: x.permute(*d))(o, 0, 2, 1, 3).reshape(B, S, D) @ wo

    a = _A_ref(A_x, A_wqkv, A_wo)
    b = _B_ref(B_x, B_wqkv, B_wo)
    return torch.concatenate([a, b], axis=-1)
```

```python
from common import *

def gen_attn(name='attn_kernel', NQ=2, UNR=8, opts=None):
    opts = opts or {}
    NW = 16 // NQ
    NT = NW * 64
    a = Asm()
    SWS = 8
    swv, sbh, sqt, sko, svo, sqo, soo = 12, 13, 14, 15, 16, 17, 18
    st = 20
    sit, sbar, sfin, snt = 24, 25, 26, 27
    sbig = 28
    vl16, vka, vva, vidx, vinc, vt = 1, 2, 3, 4, 5, 6
    S = [8, 24]
    K = [40, 44]
    V = [48, 56]
    Q = 64
    NEG = Q + 4*NQ
    O = NEG + 16*NQ
    M = O + 16*NQ
    NV = M + NQ + 10
    LK, LV, LONE = 0, 65536, 131072
    ONES_BYTES = 16384
    LDS = LONE + ONES_BYTES

    a(f's_cmp_ge_u32 s2, 256\ns_cbranch_scc1 L_attn_end')
    a('s_load_dwordx2 s[4:5], s[0:1], 64')
    a(f'v_lshrrev_b32 v{vt}, 6, v0\nv_and_b32 v{vt+1}, 63, v0\nv_lshlrev_b32 v{vl16}, 4, v{vt+1}')
    a(f'v_readfirstlane_b32 s{swv}, v{vt}')
    a(f's_and_b32 s{st}, s2, 7\ns_lshr_b32 s{st+1}, s2, 3')
    a(f's_lshl_b32 s{sbh}, s{st}, 3\ns_lshr_b32 s{st+2}, s{st+1}, 2\ns_add_u32 s{sbh}, s{sbh}, s{st+2}')
    a(f's_and_b32 s{sqt}, s{st+1}, 3\ns_lshl_b32 s{sqt}, s{sqt}, 4\ns_mul_i32 s{st+2}, s{swv}, {NQ}\ns_add_u32 s{sqt}, s{sqt}, s{st+2}')
    a(f's_lshl_b32 s{st}, s{sbh}, 16')
    a(f's_lshl_b32 s{st+2}, s{swv}, 10')
    a(f's_add_u32 s{sko}, s{st}, s{st+2}\ns_add_u32 s{svo}, s{sko}, {WS_V}\ns_add_u32 s{sko}, s{sko}, {WS_K}')
    a(f's_lshl_b32 s{sqo}, s{sqt}, 10\ns_add_u32 s{sqo}, s{sqo}, s{st}')
    a(f's_mov_b32 s{SWS+2}, {WS_BYTES}\ns_mov_b32 s{SWS+3}, 0x20000')
    a('s_waitcnt lgkmcnt(0)')
    a(f's_mov_b32 s{SWS}, s4\ns_mov_b32 s{SWS+1}, s5')
    for u in range(NQ):
        a(f'buffer_load_dwordx4 {vr(Q+4*u,4)}, v{vl16}, s[{SWS}:{SWS+3}], s{sqo} offen offset:{1024*u}')
    npc = 64 // NW
    for n in range(npc):
        a(f's_add_u32 m0, s{st+2}, {LK + n*NW*1024}')
        if n: a(f's_add_u32 s{sko}, s{sko}, {NW*1024}')
        else: a('s_nop 0')
        a(f'buffer_load_dwordx4 v{vl16}, s[{SWS}:{SWS+3}], s{sko} offen lds')
        a(f's_add_u32 m0, s{st+2}, {LV + n*NW*1024}')
        if n: a(f's_add_u32 s{svo}, s{svo}, {NW*1024}')
        else: a('s_nop 0')
        a(f'buffer_load_dwordx4 v{vl16}, s[{SWS}:{SWS+3}], s{svo} offen lds')
    a(f'v_mov_b32 v{S[0]}, 0x3f803f80\nv_mov_b32 v{S[0]+1}, v{S[0]}\nv_mov_b32 v{S[0]+2}, v{S[0]}\nv_mov_b32 v{S[0]+3}, v{S[0]}')
    a(f'v_lshlrev_b32 v{vt}, 4, v0\nv_add_u32 v{vt}, {LONE}, v{vt}')
    for n in range(max(1, ONES_BYTES // (NT*16))):
        a(f'ds_write_b128 v{vt}, {vr(S[0],4)} offset:{n*NT*16}')
    a(f's_lshr_b32 s{st}, s{sbh}, 5\ns_lshl_b32 s{st}, s{st}, 6\ns_add_u32 s{st}, s{st}, s{sqt}\ns_lshl_b32 s{st}, s{st}, 5')
    a(f's_and_b32 s{st+1}, s{sbh}, 31\ns_add_u32 s{st}, s{st}, s{st+1}\ns_lshl_b32 s{st}, s{st}, 10\ns_add_u32 s{soo}, s{st}, {WS_O}')
    a(f'v_mov_b32 v{vidx}, 0xdddddddd')
    l = vt + 1
    a(f'v_and_b32 v{l}, 63, v0')
    a(f'v_and_b32 v{M}, 15, v{l}\nv_lshlrev_b32 v{M}, 4, v{M}\nv_lshrrev_b32 v{M+1}, 5, v{l}\nv_lshl_add_u32 v{M}, v{M+1}, 8, v{M}')
    a(f'v_add_u32 v{M}, {LV}, v{M}')
    a(f'v_add_u32 v{M+1}, 4, v{l}\nv_and_b32 v{M+1}, 8, v{M+1}\nv_lshlrev_b32 v{M+1}, 3, v{M+1}\nv_add_u32 v{M+1}, {LONE}, v{M+1}')
    a(f'v_and_b32 v{M+2}, 16, v{l}\nv_cmp_eq_u32 vcc, 0, v{M+2}')
    a(f'v_mov_b32 v{M+2}, {UNR*1024}\ns_nop 0')
    a(f'v_cndmask_b32 v{M+9}, v{M+1}, v{M}, vcc\nv_cndmask_b32 v{vinc}, 0, v{M+2}, vcc')
    a(f's_mov_b32 s{sbar}, 1\ns_mov_b32 s{sfin}, 0\ns_mov_b32 s{snt}, 1\ns_mov_b32 s{sbig}, 0x5f800000')
    first = -(-UNR // NW)
    a(f's_waitcnt vmcnt({2*(npc-first)}) lgkmcnt(0)\ns_barrier')

    a.label('L_attn_max')
    a(f'v_mov_b32 v{vka}, v{vl16}')
    for u in range(NQ): a(f'v_mov_b32 v{M+u}, 0xff800000')
    a.label('L_attn_maxloop')
    a(f'ds_read_b128 {vr(K[0],4)}, v{vka}\nv_add_u32 v{vka}, 1024, v{vka}\ns_waitcnt lgkmcnt(0)')
    for u in range(NQ):
        a(f'v_mfma_f32_32x32x16_bf16 {vr(NEG+16*u,16)}, {vr(K[0],4)}, {vr(Q+4*u,4)}, 0')
    a(f's_nop {12 - NQ}')
    for u in range(NQ):
        n = NEG + 16*u
        for i in range(8):
            a(f'v_max3_f32 v{M+u}, v{n+2*i}, v{n+2*i+1}, v{M+u}')
    a(f's_sub_u32 s{snt}, s{snt}, 1\ns_cmp_lg_u32 s{snt}, 0\ns_cbranch_scc1 L_attn_maxloop')
    a(f'v_mov_b32 v{vka}, v{vl16}\nv_mov_b32 v{vva}, v{M+9}')
    a(f'ds_read_b128 {vr(K[0],4)}, v{vka}')
    if NQ == 1: a(f'ds_read_b128 {vr(K[1],4)}, v{vka} offset:1024')
    a(f'ds_read_b128 {vr(V[0],4)}, v{vva}\nds_read_b128 {vr(V[0]+4,4)}, v{vva} offset:512')
    for u in range(NQ):
        a(f'v_mov_b32 v{vt}, v{M+u}\ns_nop 1\nv_permlane32_swap_b32 v{vt}, v{M+u}\ns_nop 1')
        a(f'v_max_f32 v{vt}, v{vt}, v{M+u}\nv_sub_f32 v{NEG+16*u}, 0, v{vt}\nv_sub_f32 v{NEG+16*u+1}, 0, v{vt}')
        for i in range(1, 8):
            a(f'v_pk_mov_b32 {vr(NEG+16*u+2*i,2)}, {vr(NEG+16*u,2)}, {vr(NEG+16*u,2)}')
    z = vr(S[1]+8, 2)
    a(f'v_mov_b32 v{S[1]+8}, 0\nv_mov_b32 v{S[1]+9}, 0')
    for i in range(1, 4): a(f'v_pk_mov_b32 {vr(S[1]+8+2*i,2)}, {z}, {z}')
    for i in range(2): a(f'v_pk_mov_b32 {vr(V[1]+4+2*i,2)}, {z}, {z}')
    for i in range(8*NQ): a(f'v_pk_mov_b32 {vr(O+2*i,2)}, {z}, {z}')
    a(f's_mov_b32 s{sit}, {64//UNR}')
    a('s_waitcnt lgkmcnt(0)')
    a(f'v_mfma_f32_32x32x16_bf16 {vr(S[0],16)}, {vr(K[0],4)}, {vr(Q,4)}, {vr(NEG,16)}')
    a('s_nop 11')

    a('.p2align 6')
    a.label('L_attn_loop')
    for tt in range(UNR):
        for u in range(NQ):
            n = tt*NQ + u
            s = S[n % 2]; so = S[(n+1) % 2]
            pu = (u - 1) % NQ; pt = tt if u > 0 else tt - 1
            nu = (u + 1) % NQ; nt = tt if u < NQ-1 else tt + 1
            e = [f'v_exp_f32 v{s+i}, v{s+i}' for i in range(16)]
            pv2 = f'v_smfmac_f32_32x32x32_bf16 {vr(O+16*pu,16)}, {vr(V[pt%2]+4,4)}, {vr(so+8,8)}, v{vidx}'
            pv1 = f'v_smfmac_f32_32x32x32_bf16 {vr(O+16*u,16)}, {vr(V[tt%2],4)}, {vr(s,8)}, v{vidx}'
            qk = f'v_mfma_f32_32x32x16_bf16 {vr(so,16)}, {vr(K[nt%2],4)}, {vr(Q+4*nu,4)}, {vr(NEG+16*nu,16)}'
            a(e[0]); a(e[1]); a(pv2)
            if u == 0:
                if tt == UNR-1:
                    a(f's_cmp_eq_u32 s{sbar}, 0\ns_cbranch_scc1 L_attn_nobar\ns_waitcnt vmcnt(0)\ns_barrier\ns_mov_b32 s{sbar}, 0')
                    a.label('L_attn_nobar')
                off = (tt+1)*1024
                if NQ > 1: a(f'ds_read_b128 {vr(K[(tt+1)%2],4)}, v{vka} offset:{off}')
                a(f'ds_read_b128 {vr(V[(tt+1)%2],4)}, v{vva} offset:{off}')
                a(f'ds_read_b128 {vr(V[(tt+1)%2]+4,4)}, v{vva} offset:{off+512}')
            for i in range(2, 6): a(e[i])
            if u == NQ-1:
                a('s_waitcnt lgkmcnt(2)' if NQ == 1 else 's_waitcnt lgkmcnt(0)')
            a(qk)
            if NQ == 1:
                a(f'ds_read_b128 {vr(K[tt%2],4)}, v{vka} offset:{(tt+2)*1024}')
            for i in range(6, 10): a(e[i])
            a(pv1)
            if tt == UNR-1 and u == NQ-1:
                a(f'v_add_u32 v{vka}, {UNR*1024}, v{vka}\nv_add_u32 v{vva}, v{vinc}, v{vva}')
                a(f's_sub_u32 s{sit}, s{sit}, 1\ns_cmp_lg_u32 s{sit}, 0')
            for i in range(10, 16): a(e[i])
    a('s_cbranch_scc1 L_attn_loop')
    a('s_nop 1')
    a(f'v_smfmac_f32_32x32x32_bf16 {vr(O+16*(NQ-1),16)}, {vr(V[1]+4,4)}, {vr(S[1]+8,8)}, v{vidx}')
    a('s_waitcnt lgkmcnt(0)\ns_nop 11')
    a(f's_cmp_lg_u32 s{sfin}, 0\ns_cbranch_scc1 L_attn_store')
    acc = S[0]
    a(f'v_mov_b32 v{acc}, 0\nv_mov_b32 v{acc+1}, 0')
    for u in range(NQ):
        o = O + 16*u
        a(f'v_mul_f32 v{o+9}, s{sbig}, v{o+8}')
        for i in range(5):
            a(f'v_pk_fma_f32 {vr(acc,2)}, {vr(o+2*i,2)}, 0, {vr(acc,2)} op_sel_hi:[1,0,1]')
    a(f'v_cmp_u_f32 vcc, v{acc}, v{acc+1}')
    a(f's_mov_b32 s{snt}, 64\ns_mov_b32 s{sfin}, 1')
    a('s_cbranch_vccnz L_attn_max')
    a.label('L_attn_store')
    for u in range(NQ):
        o = O + 16*u
        a(f'v_rcp_f32 v{o+8}, v{o+8}')
    for u in range(NQ):
        o = O + 16*u
        for i in range(8): a(f'v_mul_f32 v{o+i}, v{o+8}, v{o+i}')
        for i in range(4): a(f'v_cvt_pk_bf16_f32 v{o+12+i}, v{o+2*i}, v{o+2*i+1}')
        if u: a(f's_add_u32 s{soo}, s{soo}, 32768')
        a(f'buffer_store_dwordx4 {vr(o+12,4)}, v{vl16}, s[{SWS}:{SWS+3}], s{soo} offen')
    a.label('L_attn_end')
    a('s_endpgm')
    nv = (NV + 7) // 8 * 8
    return kernel_head(name) + a.text(), kernel_desc(name, nv, 32, nv), LDS, NT
```

```python
WS_Q = 0
WS_K = 4 << 20
WS_V = 8 << 20
WS_O = 12 << 20
WS_BYTES = 16 << 20

class Asm:
    def __init__(self):
        self.lines = []
    def __call__(self, s=''):
        for l in s.split('\n'):
            self.lines.append(l if l.endswith(':') or l.startswith('.') or l.startswith(';') else '    ' + l.strip())
    def label(self, s):
        self.lines.append(s + ':')
    def text(self):
        return '\n'.join(self.lines) + '\n'

def vr(a, n=1):
    return f'v{a}' if n == 1 else f'v[{a}:{a+n-1}]'
def ar(a, n=1):
    return f'a{a}' if n == 1 else f'a[{a}:{a+n-1}]'
def sr(a, n=1):
    return f's{a}' if n == 1 else f's[{a}:{a+n-1}]'

def kernel_head(name):
    return f'''.globl {name}
.p2align 8
.type {name},@function
{name}:
'''

def kernel_desc(name, nv, ns, acc):
    return f'''.p2align 6
.amdhsa_kernel {name}
  .amdhsa_next_free_vgpr {nv}
  .amdhsa_next_free_sgpr {ns}
  .amdhsa_accum_offset {acc}
  .amdhsa_group_segment_fixed_size 0
  .amdhsa_kernarg_size 72
  .amdhsa_user_sgpr_count 2
  .amdhsa_user_sgpr_kernarg_segment_ptr 1
  .amdhsa_system_sgpr_workgroup_id_x 1
.end_amdhsa_kernel
'''
```

```python
from common import *

def gen_proj(name='proj_kernel'):
    a = Asm()
    SW, SWS, SO = 16, 20, 24
    sb, smt, snt_, swv = 28, 29, 30, 31
    soo, swo, smw, st = 32, 33, 34, 36
    vl, vl16, vwo, vwa, vt, vso = 1, 2, 3, 4, 8, 6
    WF = 16
    ACC = 32
    OF = 64
    NV = 192
    a(f's_cmp_ge_u32 s2, 256\ns_cbranch_scc1 L_proj_end')
    a('s_load_dwordx2 s[4:5], s[0:1], 16\ns_load_dwordx2 s[6:7], s[0:1], 40\ns_load_dwordx2 s[8:9], s[0:1], 64\ns_load_dwordx2 s[10:11], s[0:1], 48')
    a(f'v_lshrrev_b32 v{vt}, 6, v0\nv_and_b32 v{vl}, 63, v0\nv_lshlrev_b32 v{vl16}, 4, v{vl}')
    a(f's_and_b32 s{st}, s2, 7\ns_lshr_b32 s{st+1}, s2, 3')
    a(f'v_readfirstlane_b32 s{swv}, v{vt}')
    a(f's_lshr_b32 s{sb}, s{st}, 2\ns_and_b32 s{smt}, s{st}, 3\ns_lshl_b32 s{smt}, s{smt}, 2\ns_lshr_b32 s{st+2}, s{st+1}, 3\ns_add_u32 s{smt}, s{smt}, s{st+2}')
    a(f's_and_b32 s{snt_}, s{st+1}, 7')
    a(f's_lshl_b32 s{soo}, s{sb}, 6\ns_lshl_b32 s{st}, s{smt}, 2\ns_add_u32 s{soo}, s{soo}, s{st}\ns_add_u32 s{soo}, s{soo}, s{swv}\ns_lshl_b32 s{soo}, s{soo}, 15\ns_add_u32 s{soo}, s{soo}, {WS_O}')
    a(f'v_lshrrev_b32 v{vt}, 3, v{vl}\nv_bfe_u32 v{vt+1}, v{vl}, 4, 1\nv_lshlrev_b32 v{vt+1}, 2, v{vt+1}\nv_and_b32 v{vt+2}, 7, v{vl}')
    a(f'v_xor_b32 v{vt+1}, v{vt+1}, v{vt+2}\nv_lshlrev_b32 v{vt+1}, 4, v{vt+1}\nv_lshl_add_u32 v{vwo}, v{vt}, 10, v{vt+1}')
    a(f's_lshl_b32 s{swo}, s{swv}, 13\ns_lshl_b32 s{st}, s{snt_}, 7\ns_add_u32 s{swo}, s{swo}, s{st}')
    a(f's_lshl_b32 s{smw}, s{swv}, 10')
    a('s_waitcnt lgkmcnt(0)')
    a(f's_cmp_eq_u32 s{sb}, 0\ns_cselect_b64 s[{SW}:{SW+1}], s[4:5], s[6:7]')
    a(f's_mov_b32 s{SW+2}, {512*1024}\ns_mov_b32 s{SW+3}, 0x20000')
    a(f's_mov_b32 s{SWS}, s8\ns_mov_b32 s{SWS+1}, s9\ns_mov_b32 s{SWS+2}, {WS_BYTES}\ns_mov_b32 s{SWS+3}, 0x20000')
    for g in range(4):
        for n in range(4*g, 4*g+4):
            a(f's_add_u32 m0, s{smw}, {n*4096}')
            if n: a(f's_add_u32 s{swo}, s{swo}, 32768')
            else: a('s_nop 0')
            a(f'buffer_load_dwordx4 v{vwo}, s[{SW}:{SW+3}], s{swo} offen lds')
        for hd in range(8*g, 8*g+8):
            if hd and hd % 4 == 0: a(f's_add_u32 s{soo}, s{soo}, 4096')
            a(f'buffer_load_dwordx4 {vr(OF+4*hd,4)}, v{vl16}, s[{SWS}:{SWS+3}], s{soo} offen offset:{(hd%4)*1024}')
    a(f's_mov_b32 s{SO}, s10\ns_mov_b32 s{SO+1}, s11\ns_mov_b32 s{SO+2}, {2048*2048}\ns_mov_b32 s{SO+3}, 0x20000')
    a(f'v_lshrrev_b32 v{vt}, 5, v{vl}\nv_lshlrev_b32 v{vt+1}, 9, v{vt}')
    a(f'v_bfe_u32 v{vt+2}, v{vl}, 2, 2\nv_lshl_add_u32 v{vt+1}, v{vt+2}, 7, v{vt+1}')
    a(f'v_bfe_u32 v{vt+2}, v{vl}, 3, 1\nv_lshl_add_u32 v{vt+1}, v{vt+2}, 6, v{vt+1}')
    a(f'v_bfe_u32 v{vt+2}, v{vl}, 4, 1\nv_lshl_add_u32 v{vt+1}, v{vt+2}, 5, v{vt+1}')
    a(f'v_and_b32 v{vt+2}, 3, v{vl}\nv_lshl_add_u32 v{vwa}, v{vt+2}, 3, v{vt+1}\nv_xor_b32 v{vwa+1}, 64, v{vwa}')
    a(f'v_and_b32 v{vso}, 31, v{vl}\nv_lshlrev_b32 v{vso}, 11, v{vso}\nv_lshl_add_u32 v{vso}, v{vt}, 4, v{vso}')
    a(f's_lshl_b32 s{st}, s{smt}, 18\ns_lshl_b32 s{st+1}, s{swv}, 16\ns_add_u32 s{st}, s{st}, s{st+1}\ns_lshl_b32 s{st+1}, s{sb}, 10\ns_add_u32 s{st}, s{st}, s{st+1}')
    a(f's_lshl_b32 s{st+1}, s{snt_}, 7\ns_add_u32 s{st}, s{st}, s{st+1}')
    def reads(hd):
        buf = hd % 2
        return [f'ds_read_b64_tr_b16 {vr(WF+8*buf+4*p+2*t,2)}, v{vwa+p} offset:{hd*2048 + t*1024}' for p in range(2) for t in range(2)]
    a('s_waitcnt vmcnt(44)\ns_barrier')
    for r in reads(0): a(r)
    for hd in range(32):
        g = hd // 8
        nx = hd + 1
        if nx < 32 and nx % 8 == 0:
            a(f's_waitcnt vmcnt({12*(3-nx//8) + 8})\ns_barrier')
        rd = reads(nx) if nx < 32 else []
        younger = 12*(3-g) + (7 - hd % 8)
        if nx < 32 and nx % 8 == 0: younger = min(younger, 12*(3-nx//8) + 8)
        a(f's_waitcnt vmcnt({younger}) lgkmcnt(0)')
        for p in range(2):
            d = vr(ACC+16*p,16)
            a(f'v_mfma_f32_32x32x16_bf16 {d}, {vr(WF+8*(hd%2)+4*p,4)}, {vr(OF+4*hd,4)}, {"0" if hd==0 else d}')
            for r in rd[2*p:2*p+2]: a(r)
    a('s_nop 10')
    for p in range(2):
        d = ACC + 16*p
        t = OF + 8*p
        for i in range(8): a(f'v_cvt_pk_bf16_f32 v{t+i}, v{d+2*i}, v{d+2*i+1}')
        a('s_nop 1')
        for g2 in range(2):
            a(f'v_permlane32_swap_b32 v{t+4*g2}, v{t+4*g2+2}\nv_permlane32_swap_b32 v{t+4*g2+1}, v{t+4*g2+3}')
        for g2 in range(2):
            a(f'buffer_store_dwordx4 {vr(t+4*g2,4)}, v{vso}, s[{SO}:{SO+3}], s{st} offen offset:{p*64 + g2*32}')
    a.label('L_proj_end')
    a('s_endpgm')
    return kernel_head(name) + a.text(), kernel_desc(name, NV, 48, NV), 65536, 256
```

```python
from common import *
import struct

def f32bits(x):
    return struct.unpack('<I', struct.pack('<f', x))[0]

QSCALE = 0.25 * 1.4426950408889634

def gen_qkv(name='qkv_kernel', mapping='B'):
    a = Asm()
    SX, SW, SWS = 16, 20, 24
    sb, shg, smt, swv = 28, 29, 30, 31
    sxo, swo0, swo1 = 32, 33, 34
    smx, smw = 35, 36
    st = 37
    sq = 40
    vl = 1
    vxo = 2
    vwo = 6
    vxa = 8
    vwa = 12
    vt = 16
    vso = 24
    XF = 32
    WF = 40
    ACC = 96
    NV = 192
    XL = 0
    WL = 65536

    a(f's_cmp_ge_u32 s2, 256\ns_cbranch_scc1 L_qkv_end')
    a('s_load_dwordx4 s[4:7], s[0:1], 0\ns_load_dwordx4 s[12:15], s[0:1], 24\ns_load_dwordx2 s[8:9], s[0:1], 64')
    a(f'v_lshrrev_b32 v{vt}, 6, v0\nv_and_b32 v{vl}, 63, v0')
    a(f's_and_b32 s{st}, s2, 7\ns_lshr_b32 s{st+1}, s2, 3')
    a(f'v_readfirstlane_b32 s{swv}, v{vt}')
    a(f's_lshr_b32 s{sb}, s{st}, 2')
    if mapping == 'A':
        a(f's_and_b32 s{shg}, s{st}, 3\ns_lshl_b32 s{shg}, s{shg}, 1\ns_lshr_b32 s{st+2}, s{st+1}, 4\ns_add_u32 s{shg}, s{shg}, s{st+2}')
        a(f's_and_b32 s{smt}, s{st+1}, 15')
    else:
        a(f's_and_b32 s{shg}, s{st}, 1\ns_lshl_b32 s{shg}, s{shg}, 2\ns_lshr_b32 s{st+2}, s{st+1}, 3\ns_add_u32 s{shg}, s{shg}, s{st+2}')
        a(f's_and_b32 s{smt}, s{st}, 2\ns_lshl_b32 s{smt}, s{smt}, 2\ns_and_b32 s{st+2}, s{st+1}, 7\ns_add_u32 s{smt}, s{smt}, s{st+2}')
    a(f'v_lshrrev_b32 v{vt}, 3, v{vl}\nv_lshrrev_b32 v{vt+1}, 4, v{vl}\nv_and_b32 v{vt+2}, 7, v{vl}')
    a(f'v_xor_b32 v{vt+3}, v{vt+2}, v{vt+1}\nv_lshlrev_b32 v{vt+3}, 4, v{vt+3}')
    a(f'v_lshl_add_u32 v{vxo}, v{vt}, 10, v{vt+3}')
    a(f'v_xor_b32 v{vxo+1}, 64, v{vxo}\nv_add_u32 v{vxo+1}, 7168, v{vxo+1}')
    a(f'v_add_u32 v{vxo+2}, {2*7168}, v{vxo}\nv_add_u32 v{vxo+3}, {2*7168}, v{vxo+1}')
    a(f'v_and_b32 v{vt+3}, 1, v{vt+1}\nv_lshlrev_b32 v{vt+3}, 2, v{vt+3}\nv_xor_b32 v{vt+3}, v{vt+2}, v{vt+3}\nv_lshlrev_b32 v{vt+3}, 4, v{vt+3}')
    a(f'v_mul_u32_u24 v{vwo}, 3072, v{vt}\nv_add_u32 v{vwo}, v{vwo}, v{vt+3}')
    a(f's_lshl_b32 s{sxo}, s{smt}, 17\ns_lshl_b32 s{st}, s{swv}, 15\ns_add_u32 s{sxo}, s{sxo}, s{st}')
    a(f's_mul_i32 s{swo0}, s{swv}, {16*3072}\ns_lshl_b32 s{st}, s{shg}, 7\ns_add_u32 s{swo0}, s{swo0}, s{st}\ns_add_u32 s{swo1}, s{swo0}, {8*3072}')
    a(f's_lshl_b32 s{smx}, s{swv}, 12')
    a(f's_mul_i32 s{smw}, s{swv}, 6144\ns_add_u32 s{smw}, s{smw}, {WL}')
    a('s_waitcnt lgkmcnt(0)')
    a(f's_cmp_eq_u32 s{sb}, 0\ns_cselect_b64 s[{SX}:{SX+1}], s[4:5], s[12:13]\ns_cselect_b64 s[{SW}:{SW+1}], s[6:7], s[14:15]')
    a(f's_mov_b32 s{SX+2}, {2048*1024}\ns_mov_b32 s{SX+3}, 0x20000')
    a(f's_mov_b32 s{SW+2}, {512*3072}\ns_mov_b32 s{SW+3}, 0x20000')

    def dma(c):
        slot = c % 4
        a(f's_add_u32 m0, s{smx}, {XL + slot*16384}')
        a('s_nop 0')
        for q in range(4):
            a(f'buffer_load_dwordx4 v{vxo+q}, s[{SX}:{SX+3}], s{sxo} offen offset:{q*1024} lds')
        a(f's_add_u32 m0, s{smw}, {slot*24576}')
        a(f's_add_u32 s{sxo}, s{sxo}, 128')
        for t in range(3):
            a(f'buffer_load_dwordx4 v{vwo}, s[{SW}:{SW+3}], s{swo0} offen offset:{t*1024} lds')
        a(f's_add_u32 m0, s{smw}, {slot*24576 + 3072}')
        a(f's_add_u32 s{swo0}, s{swo0}, {64*3072}')
        for t in range(3):
            a(f'buffer_load_dwordx4 v{vwo}, s[{SW}:{SW+3}], s{swo1} offen offset:{t*1024} lds')
        a(f's_add_u32 s{swo1}, s{swo1}, {64*3072}')

    for c in range(4):
        dma(c)

    a(f's_mov_b32 s{SWS}, s8\ns_mov_b32 s{SWS+1}, s9\ns_mov_b32 s{SWS+2}, {WS_BYTES}\ns_mov_b32 s{SWS+3}, 0x20000')
    a(f'v_and_b32 v{vt}, 31, v{vl}\nv_lshrrev_b32 v{vt+1}, 5, v{vl}\nv_bfe_u32 v{vt+2}, v{vl}, 1, 3')
    a(f'v_xor_b32 v{vt+2}, v{vt+2}, v{vt+1}\nv_lshlrev_b32 v{vt+2}, 4, v{vt+2}')
    a(f'v_lshl_add_u32 v{vt+2}, v{vt}, 7, v{vt+2}\nv_add_u32 v{vxa}, s{smx}, v{vt+2}')
    for ks in range(1, 4):
        a(f'v_xor_b32 v{vxa+ks}, {ks*32}, v{vxa}')
    a(f'v_mul_u32_u24 v{vt+3}, 3072, v{vt+1}')
    a(f'v_bfe_u32 v{vt+4}, v{vl}, 2, 2\nv_lshl_add_u32 v{vt+3}, v{vt+4}, 7, v{vt+3}')
    a(f'v_bfe_u32 v{vt+4}, v{vl}, 3, 1\nv_lshl_add_u32 v{vt+3}, v{vt+4}, 6, v{vt+3}')
    a(f'v_bfe_u32 v{vt+4}, v{vl}, 4, 1\nv_lshl_add_u32 v{vt+3}, v{vt+4}, 5, v{vt+3}')
    a(f'v_and_b32 v{vt+4}, 3, v{vl}\nv_lshl_add_u32 v{vt+3}, v{vt+4}, 3, v{vt+3}')
    a(f'v_add_u32 v{vwa}, {WL}, v{vt+3}\nv_xor_b32 v{vwa+1}, 64, v{vwa}')
    a(f'v_add_u32 v{vwa+2}, 49152, v{vwa}\nv_add_u32 v{vwa+3}, 49152, v{vwa+1}')
    a(f'v_lshlrev_b32 v{vso}, 4, v{vl}')
    a(f'v_bfe_u32 v{vt+3}, v{vl}, 2, 1\nv_bfe_u32 v{vt+4}, v{vl}, 3, 1\nv_xor_b32 v{vt+3}, v{vt+3}, v{vt+4}')
    a(f'v_mul_u32_u24 v{vt+3}, 192, v{vt+3}\nv_xor_b32 v{vso+1}, v{vso}, v{vt+3}')
    a(f'v_and_b32 v{vt+3}, 15, v{vl}\nv_lshlrev_b32 v{vt+3}, 4, v{vt+3}\nv_lshl_add_u32 v{vt+3}, v{vt+1}, 8, v{vt+3}')
    a(f'v_bfe_u32 v{vt+4}, v{vl}, 4, 1\nv_lshl_add_u32 v{vso+2}, v{vt+4}, 16, v{vt+3}')
    a(f's_lshl_b32 s{sq}, s{sb}, 5\ns_lshl_b32 s{st}, s{shg}, 2\ns_add_u32 s{sq}, s{sq}, s{st}\ns_lshl_b32 s{sq}, s{sq}, 6')
    a(f's_lshl_b32 s{st}, s{smt}, 2\ns_add_u32 s{sq}, s{sq}, s{st}\ns_add_u32 s{sq}, s{sq}, s{swv}\ns_lshl_b32 s{sq}, s{sq}, 10')

    def reads(step):
        c, ks = divmod(step, 4)
        slot = c % 4
        buf = step % 2
        out = [f'ds_read_b128 {vr(XF+4*buf,4)}, v{vxa+ks} offset:{XL + slot*16384}']
        for j in range(6):
            tau, p = divmod(j, 2)
            base = vwa + p + (2 if slot >= 2 else 0)
            for t in range(2):
                off = (slot % 2)*24576 + ks*6144 + tau*1024 + t*512
                out.append(f'ds_read_b64_tr_b16 {vr(WF+24*buf+4*j+2*t,2)}, v{base} offset:{off}')
        return out
    def mfma(step, j):
        buf = step % 2
        x = vr(XF+4*buf,4); w = vr(WF+24*buf+4*j,4); d = vr(ACC+16*j,16)
        c = '0' if step == 0 else d
        if j < 4: return f'v_mfma_f32_32x32x16_bf16 {d}, {w}, {x}, {c}'
        return f'v_mfma_f32_32x32x16_bf16 {d}, {x}, {w}, {c}'

    a('s_waitcnt vmcnt(30)\ns_barrier')
    for r in reads(0): a(r)
    for step in range(32):
        c, ks = divmod(step, 4)
        nxt = step + 1
        rd = []
        if nxt < 32:
            if nxt % 4 == 0:
                later = min(c+3, 7) - (c+1)
                a(f's_waitcnt vmcnt({10*later}) lgkmcnt(0)\ns_barrier')
                if c + 4 < 8: dma(c+4)
                rd = reads(nxt)
                for j in range(6):
                    a(mfma(step, j))
                    for r in rd[2*j + (1 if j else 0): 2*j+3]: a(r)
                continue
            rd = reads(nxt)
        a('s_waitcnt lgkmcnt(0)')
        for j in range(6):
            a(mfma(step, j))
            if rd:
                for r in rd[2*j + (1 if j else 0): 2*j+3]: a(r)
    a(f's_mov_b32 s{st}, 0x{f32bits(QSCALE):08x}')
    a('s_nop 7')
    T = 32
    n = 0
    for j in range(6):
        tau, p = divmod(j, 2)
        d = ACC + 16*j
        if tau == 0:
            for r in range(16): a(f'v_mul_f32 v{d+r}, s{st}, v{d+r}')
        for half in range(2):
            t = T + 4*n; n += 1
            for i in range(4):
                a(f'v_cvt_pk_bf16_f32 v{t+i}, v{d+8*half+2*i}, v{d+8*half+2*i+1}')
            if tau < 2:
                so = (WS_Q if tau == 0 else WS_K) + (2*p + half)*65536
                a(f's_add_u32 s{st+1}, s{sq}, {so}')
                a(f'buffer_store_dwordx4 {vr(t,4)}, v{vso+tau}, s[{SWS}:{SWS+3}], s{st+1} offen')
            else:
                so = WS_V + 2*p*65536
                a(f's_add_u32 s{st+1}, s{sq}, {so}')
                a(f'buffer_store_dwordx4 {vr(t,4)}, v{vso+2}, s[{SWS}:{SWS+3}], s{st+1} offen offset:{half*512}')
    a.label('L_qkv_end')
    a('s_endpgm')
    return kernel_head(name) + a.text(), kernel_desc(name, NV, 48, NV), 163840, 256
```

```python
import sys, argparse
from qkv import gen_qkv
from attn import gen_attn
from proj import gen_proj
HDR = open('concat_heads__mha_block__mha_block__prompt.s.ref').read().split('; Override launch')[0]
def build(path, NQ=2, UNR=8, mapping='B', opts=None):
    ks = [('qkv_kernel',) + gen_qkv(mapping=mapping), ('attn_kernel',) + gen_attn(NQ=NQ, UNR=UNR, opts=opts), ('proj_kernel',) + gen_proj()]
    s = HDR
    for (n, code, desc, lds, nt) in ks:
        s += f'; @launch kernel={n} grid=(256,1,1) block=({nt},1,1) lds={lds}\n'
    s += '.amdgcn_target "amdgcn-amd-amdhsa--gfx950"\n.text\n'
    for k in ks: s += k[1]
    s += '.section .rodata,"a"\n'
    for k in ks: s += k[2]
    open(path, 'w').write(s)
if __name__ == '__main__':
    ap = argparse.ArgumentParser()
    ap.add_argument('-o', default='concat_heads__mha_block__mha_block__prompt.s')
    ap.add_argument('--nq', type=int, default=2)
    ap.add_argument('--unr', type=int, default=8)
    ap.add_argument('--map', default='B')
    x = ap.parse_args()
    build(x.o, x.nq, x.unr, x.map)
```

```python
HEAD='''.amdgcn_target "amdgcn-amd-amdhsa--gfx950"
.text
'''
def kernel(name, body, nw, iters, nv, init, acc=None):
    acc = acc or min(nv,256)
    s = f'''
.globl {name}
.p2align 8
.type {name},@function
{name}:
  s_load_dwordx2 s[4:5], s[0:1], 0
  s_load_dwordx2 s[6:7], s[0:1], 8
  v_lshrrev_b32 v1, 6, v0
  v_and_b32 v2, 63, v0
  v_lshlrev_b32 v3, 4, v0
  s_lshl_b32 s3, s2, 14
  v_add_u32 v3, s3, v3
  s_waitcnt lgkmcnt(0)
'''
    for i in range(8, min(nv,256)-3, 4):
        s += f'  global_load_dwordx4 v[{i}:{i+3}], v3, s[6:7]\n  v_add_u32 v3, 0x8000, v3\n  v_and_b32 v3, 0x7fffff, v3\n'
        if (i//4) % 16 == 0: s += '  s_waitcnt vmcnt(0)\n'
    s += '  s_waitcnt vmcnt(0)\n'
    s += f'  v_lshlrev_b32 v4, 4, v0\n'
    nrep = 131072 // (nw*64*16)
    for r in range(nrep):
        reg = 8 + 4*(r % 16)
        s += f'  ds_write_b128 v4, v[{reg}:{reg+3}]\n  v_add_u32 v4, {nw*64*16}, v4\n'
    s += init
    s += f'''  s_waitcnt lgkmcnt(0)
  s_barrier
  s_memtime s[8:9]
  s_memrealtime s[16:17]
  s_waitcnt lgkmcnt(0)
  s_mov_b32 s12, {iters}
.p2align 6
L_{name}:
{body}
  s_sub_u32 s12, s12, 1
  s_cmp_lg_u32 s12, 0
  s_cbranch_scc1 L_{name}
  s_memtime s[10:11]
  s_memrealtime s[18:19]
  s_waitcnt lgkmcnt(0)
  s_nop 15
  s_sub_u32 s10, s10, s8
  s_subb_u32 s11, s11, s9
  s_sub_u32 s18, s18, s16
  s_subb_u32 s19, s19, s17
  s_mul_i32 s13, s2, {nw}
  v_add_u32 v1, s13, v1
  v_lshlrev_b32 v1, 4, v1
  v_mov_b32 v4, s10
  v_mov_b32 v5, s11
  v_mov_b32 v6, s18
  v_mov_b32 v7, s19
  global_store_dwordx4 v1, v[4:7], s[4:5]
  s_waitcnt vmcnt(0)
  s_endpgm
'''
    kd = f'''
.p2align 6
.amdhsa_kernel {name}
  .amdhsa_next_free_vgpr {nv}
  .amdhsa_next_free_sgpr 32
  .amdhsa_accum_offset {acc}
  .amdhsa_group_segment_fixed_size 0
  .amdhsa_kernarg_size 16
  .amdhsa_user_sgpr_count 2
  .amdhsa_user_sgpr_kernarg_segment_ptr 1
  .amdhsa_system_sgpr_workgroup_id_x 1
.end_amdhsa_kernel
'''
    md = f'''  - .name: {name}
    .symbol: {name}.kd
    .kernarg_segment_size: 16
    .kernarg_segment_align: 8
    .group_segment_fixed_size: 0
    .private_segment_fixed_size: 0
    .wavefront_size: 64
    .sgpr_count: 32
    .vgpr_count: {nv}
    .max_flat_workgroup_size: 1024
    .args:
      - {{.name: kernargs, .size: 16, .offset: 0, .value_kind: by_value}}
'''
    return s, kd, md
def build(kernels, path):
    txt = HEAD; kds=''; mds=''
    for k in kernels:
        s,kd,md = kernel(*k)
        txt += s; kds += kd; mds += md
    txt += '.section .rodata,"a"\n' + kds
    txt += '.amdgpu_metadata\n---\namdhsa.version: [1, 2]\namdhsa.kernels:\n' + mds + '...\n.end_amdgpu_metadata\n'
    open(path,'w').write(txt)
```

```python
from gen3 import *
import gen3
def vr(a,n): return f'v[{a}:{a+n-1}]'
S=[8,24]; K=[40,44]; V=[48,56]; Q=64
def body(NQ, UNR=8, dma_per_tile=0, bar_every=0, loaders=False):
    NEG=Q+4*NQ; O=NEG+16*NQ
    out=[]; a=out.append
    def dma():
        return ['s_add_u32 s22, s22, 1024','s_and_b32 s22, s22, 0x7ffff','s_add_u32 m0, m0, 1024', 's_and_b32 m0, m0, 0xffff','buffer_load_dwordx4 v3, s[24:27], s22 offen sc1 lds']
    if loaders:
        a('s_cmp_ge_u32 s14, 4'); a('s_cbranch_scc1 LLD_%s')
    for tt in range(UNR):
        for u in range(NQ):
            n=tt*NQ+u; s=S[n%2]; so=S[(n+1)%2]
            pu=(u-1)%NQ; pt=tt if u>0 else tt-1
            nu=(u+1)%NQ; nt=tt if u<NQ-1 else tt+1
            e=[f'v_exp_f32 v{s+i}, v{s+i}' for i in range(16)]
            pv2=f'v_smfmac_f32_32x32x32_bf16 {vr(O+16*pu,16)}, {vr(V[pt%2]+4,4)}, {vr(so+8,8)}, v4'
            pv1=f'v_smfmac_f32_32x32x32_bf16 {vr(O+16*u,16)}, {vr(V[tt%2],4)}, {vr(s,8)}, v4'
            qk=f'v_mfma_f32_32x32x16_bf16 {vr(so,16)}, {vr(K[nt%2],4)}, {vr(Q+4*nu,4)}, {vr(NEG+16*nu,16)}'
            off=(tt+1)*1024
            L=[f'ds_read_b128 {vr(K[(tt+1)%2],4)}, v5 offset:{off}', f'ds_read_b128 {vr(V[(tt+1)%2],4)}, v6 offset:{off}', f'ds_read_b128 {vr(V[(tt+1)%2]+4,4)}, v6 offset:{off+512}'] if u==0 else []
            W=['s_waitcnt lgkmcnt(0)'] if u==NQ-1 else []
            B=[]
            if bar_every and u==0 and tt%bar_every==bar_every-1: B=(['s_waitcnt vmcnt(4)'] if not loaders else [])+['s_barrier']
            D=[]
            if not loaders and u==NQ-1 and dma_per_tile and (tt*dma_per_tile)%1==0:
                for i in range(max(1,int(dma_per_tile))): D+=dma()
            out += e[0:2]+[pv2]+B+L[:1]+e[2:6]+W+[qk]+L[1:2]+D+e[6:10]+[pv1]+L[2:]+e[10:16]
    a('v_add_u32 v5, 8192, v5\nv_add_u32 v6, v7, v6')
    if loaders:
        a('s_branch LE_%s')
        a('LLD_%s:')
        for g in range(UNR//bar_every):
            for i in range(int(dma_per_tile*bar_every)): out += dma()
            a('s_waitcnt vmcnt(8)'); a('s_barrier')
        a('LE_%s:')
    return '\n'.join(('  '+l) if not l.endswith(':') else l for l in out)
def init(NQ, nw):
    NEG=Q+4*NQ; O=NEG+16*NQ
    s='  v_mov_b32 v4, 0xdddddddd\n  v_lshlrev_b32 v5, 4, v2\n v_readfirstlane_b32 s14, v1\n'
    s+='  s_mov_b32 s24, s6\n s_mov_b32 s25, s7\n s_mov_b32 s26, 0x1000000\n s_mov_b32 s27, 0x20000\n s_and_b32 s22, s2, 7\n s_lshl_b32 s22, s22, 20\n s_add_u32 s24, s24, s22\n s_addc_u32 s25, s25, 0\n s_lshl_b32 s22, s14, 16\n s_lshl_b32 m0, s14, 13\n'
    s+='  v_mov_b32 v8, 0x3f803f80\n  v_mov_b32 v9, v8\n  v_mov_b32 v10, v8\n  v_mov_b32 v11, v8\n  v_mov_b32 v12, 0\n v_mov_b32 v13, 0\n v_mov_b32 v14, 0\n v_mov_b32 v15, 0\n'
    s+='  v_lshlrev_b32 v6, 4, v0\n  v_add_u32 v6, 131072, v6\n'
    for r in range(max(1,16384//(nw*1024))):
        s+=f'  ds_write_b128 v6, v[8:11] offset:{r*nw*1024}\n  ds_write_b128 v6, v[12:15] offset:{16384+r*nw*1024}\n'
    s+='  v_and_b32 v16, 15, v2\n  v_lshlrev_b32 v16, 4, v16\n  v_lshrrev_b32 v17, 5, v2\n  v_lshl_add_u32 v16, v17, 8, v16\n  v_add_u32 v16, 65536, v16\n'
    s+='  v_add_u32 v17, 4, v2\n  v_and_b32 v17, 8, v17\n  v_lshlrev_b32 v17, 3, v17\n  v_add_u32 v17, 131072, v17\n'
    s+='  v_and_b32 v18, 27, v2\n  v_cmp_ne_u32 vcc, 16, v18\n  v_add_u32 v18, 16384, v17\n s_nop 1\n v_cndmask_b32 v17, v17, v18, vcc\n'
    s+='  v_and_b32 v18, 16, v2\n  v_cmp_eq_u32 vcc, 0, v18\n  v_mov_b32 v18, 8192\n  s_nop 1\n  v_cndmask_b32 v6, v17, v16, vcc\n  v_cndmask_b32 v7, 0, v18, vcc\n'
    for i in range(16*NQ): s+=f'  v_mov_b32 v{NEG+i}, -2.0\n  v_mov_b32 v{O+i}, 0\n'
    for i in range(32): s+=f'  v_mov_b32 v{8+i}, 0\n'
    s+='  v_lshlrev_b32 v3, 4, v2\n'
    return s
ks=[];args=[]
def add(name,NQ,nw,**kw):
    nv=(Q+36*NQ+7)//8*8
    ks.append((name,body(NQ,**kw).replace('%s',name),nw,8,nv,init(NQ,nw)))
    args.extend([name,'256',str(nw*64),'163840'])
add('n2_nodma',2,8)
add('n2_q',2,8,dma_per_tile=0.25,bar_every=8)
add('n2_full',2,8,dma_per_tile=1,bar_every=4)
add('n4_nodma',4,4)
add('n4_self',4,4,dma_per_tile=2)
add('n4_ld',4,8,dma_per_tile=2,bar_every=4,loaders=True)
add('n4_ldq',4,8,dma_per_tile=0.5,bar_every=8,loaders=True)
build(ks,'mb10.s')
open('mb10.args','w').write(' '.join(args))
```

```python
from gen3 import *
def vr(a,n): return f'v[{a}:{a+n-1}]'
def ar(a,n): return f'a[{a}:{a+n-1}]'
S=[8,24]; K=[40,44]; V=[48,56]; Q=64
NQ=2; NEG=Q+4*NQ; O=NEG+16*NQ
def body(ao=False, akv=False, aq=False, swapqk=False):
    out=[]; a=out.append
    RO = (lambda x,n: ar(x-O,n)) if ao else vr
    RK = (lambda x,n: ar(x-40+32,n)) if akv else vr
    RQ = (lambda x,n: ar(x-Q+56,n)) if aq else vr
    for tt in range(8):
        for u in range(NQ):
            n=tt*NQ+u; s=S[n%2]; so=S[(n+1)%2]
            pu=(u-1)%NQ; pt=tt if u>0 else tt-1
            nu=(u+1)%NQ; nt=tt if u<NQ-1 else tt+1
            e=[f'v_exp_f32 v{s+i}, v{s+i}' for i in range(16)]
            pv2=f'v_smfmac_f32_32x32x32_bf16 {RO(O+16*pu,16)}, {RK(V[pt%2]+4,4)}, {vr(so+8,8)}, v4'
            pv1=f'v_smfmac_f32_32x32x32_bf16 {RO(O+16*u,16)}, {RK(V[tt%2],4)}, {vr(s,8)}, v4'
            qk=f'v_mfma_f32_32x32x16_bf16 {vr(so,16)}, {RK(K[nt%2],4)}, {RQ(Q+4*nu,4)}, {vr(NEG+16*nu,16)}'
            off=(tt+1)*1024
            L=[f'ds_read_b128 {RK(K[(tt+1)%2],4)}, v5 offset:{off}', f'ds_read_b128 {RK(V[(tt+1)%2],4)}, v6 offset:{off}', f'ds_read_b128 {RK(V[(tt+1)%2]+4,4)}, v6 offset:{off+512}'] if u==0 else []
            W=['s_waitcnt lgkmcnt(0)'] if u==NQ-1 else []
            B=[]
            if u==0 and tt==7: B=['s_barrier','s_setprio 1']
            if u==0 and tt==6: B=['s_setprio 0']
            out += e[0:2]+[pv2]+B+L[:1]+e[2:5]+W+[qk]+L[1:2]+e[5:10]+[pv1]+L[2:]+e[10:16]
    a('v_add_u32 v5, 8192, v5\nv_add_u32 v6, v7, v6')
    return '\n'.join('  '+l for l in out)
import mb10
def init():
    s=mb10.init(2,8)
    for i in range(32): s+=f'  v_accvgpr_write_b32 a{i}, v{O+i}\n'
    for i in range(24): s+=f'  v_accvgpr_write_b32 a{32+i}, v{40+i}\n'
    for i in range(8): s+=f'  v_accvgpr_write_b32 a{56+i}, v{Q+i}\n'
    return s
ks=[];args=[]
def add(name,**kw):
    ks.append((name,body(**kw),8,8,208,init(),144)); args.extend([name,'256','512','163840'])
add('v'); add('ao',ao=True); add('aokv',ao=True,akv=True); add('all',ao=True,akv=True,aq=True); add('akv',akv=True)
build(ks,'mb15.s'); open('mb15.args','w').write(' '.join(args))
```
